```python
import torch

def _softmax(x, axis=-1):
    return torch.softmax(x, dim=axis)
def _gelu(x):
    return torch.nn.functional.gelu(x, approximate="tanh")
def _silu(x):
    return torch.nn.functional.silu(x)
def _sigmoid(x):
    return torch.sigmoid(x)
def _layernorm(x, axis=-1, eps=1e-5):
    m = x.mean(dim=axis, keepdim=True)
    v = x.var(dim=axis, keepdim=True, unbiased=False)
    return (x - m) / torch.sqrt(v + eps)
def _scatter_add(tgt, idx, src, axis=0):
    return tgt.clone().index_add_(axis, idx, src)
def _segment_sum(src, seg, n):
    out = torch.zeros((n,) + src.shape[1:], dtype=src.dtype)
    return out.index_add_(0, seg, src)
def _pad(x, pw):
    flat = tuple(v for pair in reversed(pw) for v in pair)
    return torch.nn.functional.pad(x, flat)

kernel_name = 'gated_mix__spectral_gfnet__softmax_full_mha__prompt'

def setup_inputs():

    _w = (lambda a: (lambda t: t.to(torch.bfloat16) if t.is_floating_point() else t)(torch.as_tensor(a)))
    def _A_setup():
        B, S, D = 1, 2048, 448
        Df = D // 2 + 1
        return {
            "x": _w((lambda *s: torch.randn(*s, dtype=torch.bfloat16) * 0.05)(B, S, D)),
            "w_r": _w((lambda *s: torch.randn(*s, dtype=torch.bfloat16) * 6.4)(S, Df) * 0.02),
            "w_i": _w((lambda *s: torch.randn(*s, dtype=torch.bfloat16) * 6.4)(S, Df) * 0.02),
        }
    _A_in = _A_setup()

    def _B_setup():
        B, S, D = 1, 2048, 448
        return {
            "x": _w((lambda *s: torch.randn(*s, dtype=torch.bfloat16) * 0.05)(B, S, D)),
            "wqkv": _w((lambda *s: torch.randn(*s, dtype=torch.bfloat16) * 0.8)(D, 3 * D)),
            "wo": _w((lambda *s: torch.randn(*s, dtype=torch.bfloat16) * 0.05)(D, D)),
        }
    _B_in = _B_setup()

    return {
        "A_x": _A_in["x"],
        "A_w_r": _A_in["w_r"],
        "A_w_i": _A_in["w_i"],
        "B_x": _B_in["x"],
        "B_wqkv": _B_in["wqkv"],
        "B_wo": _B_in["wo"],
        "gate_w": _w((lambda *s: torch.randn(*s, dtype=torch.bfloat16) * 0.05)(448) * 16.0),
    }

def reference(A_x, A_w_r, A_w_i, B_x, B_wqkv, B_wo, gate_w):
    def _A_ref(x, w_r, w_i):
        B, S, D = x.shape
        X = (lambda x, axes=(-2,-1): torch.fft.rfft2(x.float(), dim=axes))(x, axes=(-2, -1))
        W = w_r + 1j * w_i
        X = X * W
        y = (lambda x, s, axes=(-2,-1): torch.fft.irfft2(x, s=s, dim=axes).to(torch.bfloat16))(X, (S, D), axes=(-2, -1))
        return y

    def _B_ref(x, wqkv, wo):
        B, S, D = x.shape
        H = 16; Dh = D // H
        qkv = (lambda x, *d: x.permute(*d))((x @ wqkv).reshape(B, S, 3, H, Dh), 2, 0, 3, 1, 4)
        q, k, v = qkv[0], qkv[1], qkv[2]
        scale = Dh ** -0.5
        scores = torch.einsum("bhqd,bhkd->bhqk", q, k) * scale
        p = _softmax(scores, axis=-1)
        o = torch.einsum("bhqk,bhkd->bhqd", p, v)
        return (lambda x, *d: x.permute(*d))(o, 0, 2, 1, 3).reshape(B, S, D) @ wo

    x = A_x
    g = _sigmoid((x * gate_w).sum(-1, keepdims=True))
    a = _A_ref(x, A_w_r, A_w_i)
    b = _B_ref(x, B_wqkv, B_wo)
    return g * a + (1 - g) * b
```

```python
import math, struct
def bf16(x):
    u = struct.unpack('<I', struct.pack('<f', x))[0]
    return ((u + 0x7fff + ((u >> 16) & 1)) >> 16) & 0xffff
def f32(x):
    return struct.unpack('<I', struct.pack('<f', x))[0]
def vr(b, n=1):
    return f"v{b}" if n == 1 else f"v[{b}:{b+n-1}]"
def ar(b, n=1):
    return f"a{b}" if n == 1 else f"a[{b}:{b+n-1}]"
def sr(b, n=1):
    return f"s{b}" if n == 1 else f"s[{b}:{b+n-1}]"
class Asm:
    def __init__(self):
        self.L = []
    def __call__(self, s):
        for l in s.split("\n"):
            self.L.append("    " + l.strip())
    def lab(self, l):
        self.L.append(l + ":")
    def raw(self, s):
        self.L.append(s)
    def c(self, s):
        self.L.append("    ; " + s)
    def nop(self, n):
        while n > 0:
            k = min(n, 16)
            self(f"s_nop {k-1}")
            n -= k
    def srd(self, d, lo, hi, size):
        self(f"s_mov_b32 s{d}, s{lo}")
        self(f"s_and_b32 s{d+1}, s{hi}, 0xffff")
        self(f"s_mov_b32 s{d+2}, {size}")
        self(f"s_mov_b32 s{d+3}, 0x20000")
    def text(self):
        return "\n".join(self.L) + "\n"
class VA:
    def __init__(self, start=1):
        self.n = start
    def __call__(self, k=1, al=None):
        if al is None:
            al = 2 if k > 1 else 1
        self.n = (self.n + al - 1) // al * al
        b = self.n
        self.n += k
        return b
def kdesc(name, vg, sg=96, acc=None):
    if acc is None:
        acc = (vg + 3) // 4 * 4
    return f""".amdhsa_kernel {name}
  .amdhsa_next_free_vgpr {vg}
  .amdhsa_next_free_sgpr {sg}
  .amdhsa_accum_offset {acc}
  .amdhsa_group_segment_fixed_size 0
  .amdhsa_kernarg_size 80
  .amdhsa_user_sgpr_count 2
  .amdhsa_user_sgpr_kernarg_segment_ptr 1
  .amdhsa_system_sgpr_workgroup_id_x 1
  .amdhsa_float_denorm_mode_32 3
.end_amdhsa_kernel
"""
```

```python
import sys, math
from asmlib import *

QF, KVF, ZF, OF, YF, WOT, GT = 0x000000, 0x200000, 0x600000, 0x800000, 0xA00000, 0xC00000, 0xD00000
WS_SIZE = 0x1000000
TF, TG, T64F, T64I, T32I, TEND = 0, 458752, 860160, 892928, 925696, 933888
QSCALE = 28 ** -0.5 * math.log2(math.e)
BIG = 0x7ff00000

def getpc_tabs(A, d):
    A(f"s_getpc_b64 s[{d}:{d+1}]")
    A(f"s_add_u32 s{d}, s{d}, tabs@rel32@lo+4")
    A(f"s_addc_u32 s{d+1}, s{d+1}, tabs@rel32@hi+12")

def k1(A):
    name = "k1_kernel"
    A.raw(f".globl {name}\n.p2align 8\n.type {name},@function")
    A.lab(name)
    V = VA(1)
    vLane = V(); vL16 = V(); vXe = V(); vXo = V(); vB = V(4, 1); vXr = V(); vXa = V(4, 1); vWr = V(); vWa = V()
    vT = V(8, 2)
    acc = V(64, 4)
    z = V(64, 4)
    fb = z
    gx0 = z+32; gx1 = z+36; gw = z+40; wt = z+44; vWo = V(); vWo2 = V(); vWs = V()
    mC = V(32, 4)
    pk = V(24, 4)
    nv = V.n
    sX, sB, sWS, sWO, sGW = 16, 20, 24, 28, 32
    sW, sM, sN, sKap, sXb, sBb, sBs, sW4 = 36, 37, 38, 39, 40, 41, 42, 43
    sT0, sT1, sT2, sT3 = 44, 45, 46, 47
    sHi = 48
    sSc = 50
    sD0, sD1, sD2 = 52, 53, 54
    sMk = 56
    A("s_cmp_ge_u32 s2, 256")
    A("s_cbranch_scc1 K1_END")
    A("s_load_dwordx2 s[4:5], s[0:1], 0")
    A("s_load_dwordx2 s[6:7], s[0:1], 32")
    A("s_load_dwordx4 s[8:11], s[0:1], 40")
    A("s_load_dwordx2 s[12:13], s[0:1], 72")
    A(f"v_lshrrev_b32 v{vT}, 6, v0")
    A(f"v_and_b32 v{vLane}, 63, v0")
    A(f"v_readfirstlane_b32 s{sW}, v{vT}")
    A(f"v_lshlrev_b32 v{vL16}, 4, v{vLane}")
    A(f"s_and_b32 s{sT0}, s2, 3")
    A(f"s_lshl_b32 s{sT0}, s{sT0}, 2")
    A(f"s_bfe_u32 s{sT1}, s2, 0x20003")
    A(f"s_add_u32 s{sM}, s{sT0}, s{sT1}")
    A(f"s_lshr_b32 s{sT0}, s2, 5")
    A(f"s_lshl_b32 s{sN}, s{sT0}, 1")
    A(f"s_bfe_u32 s{sT2}, s2, 0x10002")
    A(f"s_add_u32 s{sN}, s{sN}, s{sT2}")
    A(f"s_lshl_b32 s{sT1}, s{sT1}, 1")
    A(f"s_add_u32 s{sKap}, s{sT0}, s{sT1}")
    A(f"s_cmp_ge_u32 s{sKap}, 7")
    A(f"s_cselect_b32 s{sT1}, 7, 0")
    A(f"s_sub_u32 s{sKap}, s{sKap}, s{sT1}")
    A(f"s_lshl_b32 s{sW4}, s{sW}, 12")
    A(f"v_lshrrev_b32 v{vT}, 3, v{vLane}")
    A(f"v_mul_u32_u24 v{vT}, 57344, v{vT}")
    A(f"v_and_b32 v{vT+1}, 7, v{vLane}")
    A(f"v_lshrrev_b32 v{vT+2}, 4, v{vLane}")
    A(f"v_xor_b32 v{vT+1}, v{vT+1}, v{vT+2}")
    A(f"v_lshl_add_u32 v{vXe}, v{vT+1}, 4, v{vT}")
    A(f"v_xor_b32 v{vXo}, 64, v{vXe}")
    A(f"s_lshl_b32 s{sT0}, s{sM}, 2")
    A(f"s_add_u32 s{sT0}, s{sT0}, s{sW}")
    A(f"s_mul_i32 s{sXb}, s{sT0}, 896")
    A(f"s_cmp_ge_u32 s{sN}, 12")
    A("s_cbranch_scc1 K1_SETF")
    A(f"s_lshl_b32 s{sT0}, s{sW}, 8")
    for i in range(4):
        A(f"v_add_u32 v{vT}, s{sT0}, v{vLane}")
        if i: A(f"v_add_u32 v{vT}, {64*i}, v{vT}")
        A(f"v_mul_u32_u24 v{vT+1}, 4682, v{vT}")
        A(f"v_lshrrev_b32 v{vT+1}, 16, v{vT+1}")
        A(f"v_mul_u32_u24 v{vT+2}, 14, v{vT+1}")
        A(f"v_sub_u32 v{vT+2}, v{vT}, v{vT+2}")
        A(f"v_and_b32 v{vT+3}, 0xfff8, v{vT+1}")
        A(f"v_bfe_u32 v{vT+4}, v{vT+1}, 1, 2")
        A(f"v_and_b32 v{vT+5}, 1, v{vT+1}")
        A(f"v_lshl_add_u32 v{vT+4}, v{vT+5}, 2, v{vT+4}")
        A(f"v_add_u32 v{vT+3}, v{vT+3}, v{vT+4}")
        A(f"v_mul_u32_u24 v{vT+3}, 2688, v{vT+3}")
        A(f"v_lshl_add_u32 v{vB+i}, v{vT+2}, 4, v{vT+3}")
    A(f"s_lshr_b32 s{sT0}, s{sN}, 2")
    A(f"s_mul_i32 s{sT0}, s{sT0}, 896")
    A(f"s_and_b32 s{sT1}, s{sN}, 3")
    A(f"s_mul_i32 s{sT1}, s{sT1}, 224")
    A(f"s_add_u32 s{sBb}, s{sT0}, s{sT1}")
    A(f"s_mov_b32 s{sBs}, 172032")
    A("s_waitcnt lgkmcnt(0)")
    A.srd(sB, 6, 7, 1204224)
    A("s_branch K1_SETD")
    A.lab("K1_SETF")
    for i in range(4):
        A(f"v_add_u32 v{vB+i}, s{sW4}, v{vL16}")
        if i: A(f"v_add_u32 v{vB+i}, {1024*i}, v{vB+i}")
    A(f"s_sub_u32 s{sT0}, s{sN}, 12")
    A(f"s_mul_i32 s{sBb}, s{sT0}, 114688")
    A(f"s_mov_b32 s{sBs}, 16384")
    getpc_tabs(A, 14)
    A("s_waitcnt lgkmcnt(0)")
    A.srd(sB, 14, 15, TG)
    A.lab("K1_SETD")
    A.srd(sX, 4, 5, 1835008)
    A.srd(sWO, 8, 9, 401408)
    A.srd(sGW, 10, 11, 896)
    A.srd(sWS, 12, 13, WS_SIZE)
    A(f"v_mov_b32 v{vT+1}, {BIG}")
    A(f"v_cmp_gt_u32 vcc, 56, v{vLane}")
    A(f"s_lshl_b32 s{sD0}, s2, 2")
    A(f"s_add_u32 s{sD0}, s{sD0}, s{sW}")
    A(f"v_cndmask_b32 v{vT}, v{vT+1}, v{vL16}, vcc")
    A(f"s_mul_i32 s{sT0}, s{sD0}, 1792")
    A(f"buffer_load_dwordx4 {vr(gx0,4)}, v{vT}, {sr(sX,4)}, s{sT0} offen")
    A(f"buffer_load_dwordx4 {vr(gx1,4)}, v{vT}, {sr(sX,4)}, s{sT0} offen offset:896")
    A(f"buffer_load_dwordx4 {vr(gw,4)}, v{vT}, {sr(sGW,4)}, 0 offen")
    A(f"s_lshr_b32 s{sT0}, s{sD0}, 5")
    A(f"s_lshl_b32 s{sT0}, s{sT0}, 6")
    A(f"s_bfe_u32 s{sT1}, s{sD0}, 0x40001")
    A(f"s_mul_i32 s{sT1}, s{sT1}, {28*896}")
    A(f"s_add_u32 s{sT0}, s{sT0}, s{sT1}")
    A(f"s_and_b32 s{sT1}, s{sD0}, 1")
    A(f"s_mul_i32 s{sT2}, s{sT1}, {16*896}")
    A(f"s_add_u32 s{sT0}, s{sT0}, s{sT2}")
    A(f"v_lshrrev_b32 v{vT+2}, 5, v{vLane}")
    A(f"v_and_b32 v{vT+3}, 31, v{vLane}")
    A(f"v_lshlrev_b32 v{vT+3}, 1, v{vT+3}")
    A(f"v_mul_u32_u24 v{vWo}, 3584, v{vT+2}")
    A(f"v_add_u32 v{vWo}, v{vWo}, v{vT+3}")
    A(f"v_and_b32 v{vT+2}, s{sT1}, v{vT+2}")
    A(f"v_add_u32 v{vWo2}, {8*896}, v{vWo}")
    A(f"v_cmp_eq_u32 vcc, 0, v{vT+2}")
    A(f"s_cmp_lt_u32 s{sD0}, 448")
    A(f"s_cselect_b64 s[{sMk}:{sMk+1}], -1, 0")
    A(f"v_cndmask_b32 v{vWo2}, v{vT+1}, v{vWo2}, vcc")
    A(f"v_cndmask_b32 v{vWo}, v{vT+1}, v{vWo}, s[{sMk}:{sMk+1}]")
    A(f"v_cndmask_b32 v{vWo2}, v{vT+1}, v{vWo2}, s[{sMk}:{sMk+1}]")
    A(f"v_cndmask_b32 v{vWs}, v{vT+1}, v{vL16}, s[{sMk}:{sMk+1}]")
    for j in range(8):
        A(f"buffer_load_ushort v{wt+j}, v{vWo if j<4 else vWo2}, {sr(sWO,4)}, s{sT0} offen offset:{896*(j&3)}")
    NSIDE_ST = 2
    def dma_chunk(slot):
        A(f"s_lshl_b32 s{sT0}, s{sKap}, 7")
        A(f"s_add_u32 s{sT0}, s{sT0}, s{sXb}")
        A(f"s_mul_i32 s{sT1}, s{sKap}, s{sBs}")
        A(f"s_add_u32 s{sT1}, s{sT1}, s{sBb}")
        for i in range(4):
            A(f"s_add_u32 m0, s{sW4}, {slot*32768 + i*1024}")
            A(f"s_add_u32 s{sT2}, s{sT0}, {i*458752}")
            A(f"buffer_load_dwordx4 v{vXo if i&1 else vXe}, {sr(sX,4)}, s{sT2} offen lds")
        for i in range(4):
            A(f"s_add_u32 m0, s{sW4}, {slot*32768 + 16384 + i*1024}")
            if i == 0: A(f"s_add_u32 s{sKap}, s{sKap}, 1")
            elif i == 1: A(f"s_cmp_eq_u32 s{sKap}, 7")
            elif i == 2: A("s_nop 0")
            else: A("s_nop 0")
            if i == 1: A(f"s_cselect_b32 s{sKap}, 0, s{sKap}")
            A(f"buffer_load_dwordx4 v{vB+i}, {sr(sB,4)}, s{sT1} offen lds")
    for s in range(5):
        dma_chunk(s)
    A(f"s_mov_b32 s{sHi}, 0")
    A(f"s_mov_b32 s{sHi+1}, -1")
    A(f"v_and_b32 v{vT}, 31, v{vLane}")
    A(f"v_lshrrev_b32 v{vT+1}, 5, v{vLane}")
    A(f"v_bfe_u32 v{vT+2}, v{vT}, 2, 1")
    A(f"v_bfe_u32 v{vT+3}, v{vT}, 3, 1")
    A(f"v_xor_b32 v{vT+2}, v{vT+2}, v{vT+3}")
    A(f"v_mul_u32_u24 v{vT+2}, 12, v{vT+2}")
    A(f"s_lshr_b32 s{sT0}, s{sN}, 2")
    A(f"s_cmp_eq_u32 s{sT0}, 2")
    A(f"s_cselect_b32 s{sT0}, 15, 0")
    A(f"v_and_b32 v{vT+2}, s{sT0}, v{vT+2}")
    A(f"v_xor_b32 v{vT}, v{vT}, v{vT+2}")
    A(f"v_bfe_u32 v{vT+2}, v{vT}, 1, 3")
    A(f"v_xor_b32 v{vT+2}, v{vT+2}, v{vT+1}")
    A(f"v_lshlrev_b32 v{vT}, 7, v{vT}")
    A(f"v_lshl_add_u32 v{vXr}, v{vT+2}, 4, v{vT}")
    A(f"s_and_b32 s{sT0}, s{sW}, 1")
    A(f"s_lshl_b32 s{sT0}, s{sT0}, 13")
    A(f"v_add_u32 v{vXr}, s{sT0}, v{vXr}")
    A(f"s_lshr_b32 s{sT3}, s{sW}, 1")
    A(f"s_cmp_ge_u32 s{sN}, 12")
    A("s_cbranch_scc1 K1_PREF")
    A(f"v_bfe_u32 v{vT}, v{vLane}, 2, 2")
    A(f"v_lshl_add_u32 v{vT}, v{vT+1}, 2, v{vT}")
    A(f"v_mul_u32_u24 v{vT}, 448, v{vT}")
    A(f"v_bfe_u32 v{vT+2}, v{vLane}, 4, 1")
    A(f"v_lshl_add_u32 v{vT}, v{vT+2}, 5, v{vT}")
    A(f"v_and_b32 v{vT+2}, 3, v{vLane}")
    A(f"v_lshl_add_u32 v{vT}, v{vT+2}, 3, v{vT}")
    A(f"s_mul_i32 s{sT0}, s{sT3}, 112")
    A(f"s_add_u32 s{sT0}, s{sT0}, 16384")
    A(f"v_add_u32 v{vWr}, s{sT0}, v{vT}")
    A("s_branch K1_SIDE")
    A.lab("K1_PREF")
    A(f"s_lshl_b32 s{sT0}, s{sT3}, 11")
    A(f"s_add_u32 s{sT0}, s{sT0}, 16384")
    A(f"v_add_u32 v{vWr}, s{sT0}, v{vL16}")
    A(f"v_and_b32 v{vT}, 31, v{vLane}")
    A(f"v_cvt_f32_u32 v{vT}, v{vT}")
    A(f"s_and_b32 s{sT0}, s{sW}, 1")
    A(f"s_lshl_b32 s{sT0}, s{sT0}, 1")
    A(f"s_lshl_b32 s{sT1}, s{sM}, 2")
    A(f"s_add_u32 s{sT0}, s{sT0}, s{sT1}")
    A(f"v_lshlrev_b32 v{vT+1}, 8, v{vT+1}")
    A(f"v_add_u32 v{vT+1}, s{sT0}, v{vT+1}")
    A(f"v_cvt_f32_u32 v{vT+1}, v{vT+1}")
    for a in range(2):
        if a: A(f"v_add_f32 v{vT+1}, 1.0, v{vT+1}")
        A(f"v_mul_f32 v{vT+2}, v{vT}, v{vT+1}")
        A(f"v_mul_f32 v{vT+2}, {hex(f32(1/2048))}, v{vT+2}")
        for f in range(2):
            for jj in range(4):
                for e in range(2):
                    j = 2*jj + e
                    cj = 16*f + 8*(j >> 2) + (j & 3)
                    A(f"v_fmamk_f32 v{vT+3+e}, v{vT}, {hex(f32(cj/32))}, v{vT+2}")
                A(f"v_cos_f32 v{vT+5}, v{vT+3}")
                A(f"v_cos_f32 v{vT+6}, v{vT+4}")
                A(f"v_sin_f32 v{vT+3}, v{vT+3}")
                A(f"v_sin_f32 v{vT+4}, v{vT+4}")
                A(f"v_cvt_pk_bf16_f32 v{mC+16*a+4*f+jj}, v{vT+5}, v{vT+6}")
                A(f"v_cvt_pk_bf16_f32 v{mC+16*a+8+4*f+jj}, v{vT+3}, v{vT+4}")
    A.lab("K1_SIDE")
    A(f"v_mov_b32 v{vT}, 0")
    A(f"v_mov_b32 v{vT+1}, 0")
    A("s_waitcnt vmcnt(40)")
    for i in range(4):
        A(f"v_dot2c_f32_bf16 v{vT}, v{gx0+i}, v{gw+i}")
        A(f"v_dot2c_f32_bf16 v{vT+1}, v{gx1+i}, v{gw+i}")
    for i in range(4):
        A(f"v_lshl_or_b32 v{wt+i}, v{wt+2*i+1}, 16, v{wt+2*i}")
    A(f"s_lshl_b32 s{sT0}, s{sD0}, 10")
    A(f"s_add_u32 s{sT0}, s{sT0}, {WOT}")
    A(f"buffer_store_dwordx4 {vr(wt,4)}, v{vWs}, {sr(sWS,4)}, s{sT0} offen")
    A("s_nop 1")
    for d in ("row_shr:1", "row_shr:2", "row_shr:4", "row_shr:8"):
        A(f"v_add_f32_dpp v{vT}, v{vT}, v{vT} {d} row_mask:0xf bank_mask:0xf bound_ctrl:0")
        A(f"v_add_f32_dpp v{vT+1}, v{vT+1}, v{vT+1} {d} row_mask:0xf bank_mask:0xf bound_ctrl:0")
        A("s_nop 0")
    for d in ("row_bcast:15 row_mask:0xa", "row_bcast:31 row_mask:0xc"):
        A(f"v_add_f32_dpp v{vT}, v{vT}, v{vT} {d} bank_mask:0xf")
        A(f"v_add_f32_dpp v{vT+1}, v{vT+1}, v{vT+1} {d} bank_mask:0xf")
        A("s_nop 0")
    A(f"v_cvt_pk_bf16_f32 v{vT}, v{vT}, v{vT+1}")
    A(f"v_and_b32 v{vT+1}, 0xffff0000, v{vT}")
    A(f"v_lshlrev_b32 v{vT}, 16, v{vT}")
    A(f"v_mul_f32 v{vT}, {hex(f32(-math.log2(math.e)))}, v{vT}")
    A(f"v_mul_f32 v{vT+1}, {hex(f32(-math.log2(math.e)))}, v{vT+1}")
    A(f"v_exp_f32 v{vT}, v{vT}")
    A(f"v_exp_f32 v{vT+1}, v{vT+1}")
    A("s_nop 0")
    A(f"v_add_f32 v{vT}, 1.0, v{vT}")
    A(f"v_add_f32 v{vT+1}, 1.0, v{vT+1}")
    A(f"v_rcp_f32 v{vT}, v{vT}")
    A(f"v_rcp_f32 v{vT+1}, v{vT+1}")
    A("s_nop 0")
    A(f"v_cvt_pk_bf16_f32 v{vT}, v{vT}, v{vT+1}")
    A(f"v_lshlrev_b32 v{gx0}, 16, v{vT}")
    A(f"v_and_b32 v{gx0+2}, 0xffff0000, v{vT}")
    A(f"v_sub_f32 v{vT}, 1.0, v{gx0}")
    A(f"v_sub_f32 v{vT+1}, 1.0, v{gx0+2}")
    A(f"v_cvt_pk_bf16_f32 v{vT}, v{vT}, v{vT+1}")
    A(f"v_lshlrev_b32 v{gx0+1}, 16, v{vT}")
    A(f"v_and_b32 v{gx0+3}, 0xffff0000, v{vT}")
    A(f"v_mov_b32 v{vT+1}, {BIG}")
    A(f"v_cmp_eq_u32 vcc, 63, v{vLane}")
    A(f"s_lshl_b32 s{sT0}, s{sD0}, 4")
    A(f"s_add_u32 s{sT0}, s{sT0}, {GT}")
    A(f"v_cndmask_b32 v{vT}, v{vT+1}, 0, vcc")
    A(f"buffer_store_dwordx4 {vr(gx0,4)}, v{vT}, {sr(sWS,4)}, s{sT0} offen")
    A(f"s_cmp_ge_u32 s{sN}, 12")
    A("s_cbranch_scc1 K1_LOOP_F")
    A(f"s_cmp_ge_u32 s{sN}, 8")
    A("s_cbranch_scc1 K1_LOOP_V")

    def mainloop(kind):
        nrd = 4 if kind == 'F' else 6
        vm = [32+NSIDE_ST, 24+NSIDE_ST, 24+NSIDE_ST, 24+NSIDE_ST, 16+NSIDE_ST, 8, 0]
        def reads(u, b):
            base = fb + 16*b
            A(f"ds_read_b128 {vr(base,4)}, v{vXa+u}")
            A(f"ds_read_b128 {vr(base+4,4)}, v{vXa+u} offset:4096")
            for ct in range(2):
                r = base + 8 + 4*ct
                if kind == 'F':
                    A(f"ds_read_b128 {vr(r,4)}, v{vWa} offset:{u*4096 + ct*1024}")
                else:
                    A(f"ds_read_b64_tr_b16 {vr(r,2)}, v{vWa} offset:{u*3584 + ct*56}")
                    A(f"ds_read_b64_tr_b16 {vr(r+2,2)}, v{vWa} offset:{u*3584 + ct*56 + 224}")
        for j in range(7):
            slot = j % 5
            A(f"v_add_u32 v{vXa}, {slot*32768}, v{vXr}")
            A(f"v_add_u32 v{vWa}, {slot*32768}, v{vWr}")
            for u in range(1, 4):
                A(f"v_xor_b32 v{vXa+u}, {u<<5}, v{vXa}")
            A(f"s_waitcnt vmcnt({vm[j]})")
            A("s_barrier")
            reads(0, 0); reads(1, 1)
            if j in (1, 2):
                dma_chunk(j-1)
            for u in range(4):
                b = u & 1
                base = fb + 16*b
                A(f"s_waitcnt lgkmcnt({nrd if u < 3 else 0})")
                for a in range(2):
                    for ct in range(2):
                        d = acc + 16*(2*a+ct)
                        xf = vr(base+4*a, 4); wf = vr(base+8+4*ct, 4)
                        c = "0" if (j == 0 and u == 0) else vr(d, 16)
                        if kind == 'QK': A(f"v_mfma_f32_32x32x16_bf16 {vr(d,16)}, {wf}, {xf}, {c}")
                        else: A(f"v_mfma_f32_32x32x16_bf16 {vr(d,16)}, {xf}, {wf}, {c}")
                if u < 2: reads(u+2, b)
    mainloop('QK')
    A(f"s_cmp_lt_u32 s{sN}, 4")
    A(f"s_cselect_b32 s{sSc}, {hex(f32(QSCALE))}, 1.0")
    A(f"s_cselect_b32 s{sD0}, {QF}, {KVF}")
    A(f"s_cselect_b32 s{sT0}, 11, 12")
    A(f"s_mov_b32 s{sSc+1}, s{sSc}")
    def tile_base():
        A(f"s_and_b32 s{sT1}, s{sN}, 3")
        A(f"s_lshl_b32 s{sT1}, s{sT1}, 1")
        A(f"s_add_u32 s{sT1}, s{sT1}, s{sT3}")
        A(f"s_lshl_b32 s{sT1}, s{sT1}, 7")
        A(f"s_lshl_b32 s{sT2}, s{sM}, 2")
        A(f"s_add_u32 s{sT1}, s{sT1}, s{sT2}")
        A(f"s_and_b32 s{sT2}, s{sW}, 1")
        A(f"s_lshl_b32 s{sT2}, s{sT2}, 1")
        A(f"s_add_u32 s{sT1}, s{sT1}, s{sT2}")
        A(f"s_lshl_b32 s{sT1}, s{sT1}, s{sT0}")
        A(f"s_add_u32 s{sD1}, s{sD0}, s{sT1}")
        A(f"s_lshl_b32 s{sD2}, 64, s{sT0}")
        A(f"s_lshl_b32 s{sT1}, 1, s{sT0}")
    tile_base()
    def soff(a, ct):
        A(f"s_mov_b32 s{sT2}, s{sD1}")
        if a: A(f"s_add_u32 s{sT2}, s{sT2}, s{sT1}")
        if ct: A(f"s_add_u32 s{sT2}, s{sT2}, s{sD2}")
    for a in range(2):
        for ct in range(2):
            d = acc + 16*(2*a+ct); p = pk + 8*((2*a+ct) % 3)
            for r in range(8):
                A(f"v_pk_mul_f32 {vr(d+2*r,2)}, {vr(d+2*r,2)}, s[{sSc}:{sSc+1}]")
            for r in range(8):
                A(f"v_cvt_pk_bf16_f32 v{p+r}, v{d+2*r}, v{d+2*r+1}")
            A(f"v_cndmask_b32 v{p+6}, v{p+6}, 0, s[{sHi}:{sHi+1}]")
            A(f"v_cndmask_b32 v{p+7}, v{p+7}, 0, s[{sHi}:{sHi+1}]")
            soff(a, ct)
            A(f"buffer_store_dwordx4 {vr(p,4)}, v{vL16}, {sr(sWS,4)}, s{sT2} offen")
            A(f"buffer_store_dwordx4 {vr(p+4,4)}, v{vL16}, {sr(sWS,4)}, s{sT2} offen offset:1024")
    A("s_endpgm")
    A.lab("K1_LOOP_V")
    mainloop('V')
    A(f"s_mov_b32 s{sD0}, {KVF+2048}")
    A(f"s_mov_b32 s{sT0}, 12")
    tile_base()
    A(f"v_and_b32 v{vT}, 31, v{vLane}")
    A(f"v_cmp_eq_u32 vcc, 28, v{vT}")
    A(f"v_mov_b32 v{vT+1}, 0x3f803f80")
    A(f"v_cmp_le_u32 s[{sMk}:{sMk+1}], 28, v{vT}")
    A(f"v_cndmask_b32 v{vT+1}, 0, v{vT+1}, vcc")
    for a in range(2):
        for ct in range(2):
            d = acc + 16*(2*a+ct); p = pk + 8*((2*a+ct) % 3)
            for r in range(8):
                A(f"v_cvt_pk_bf16_f32 v{p+r}, v{d+2*r}, v{d+2*r+1}")
            for r in range(8):
                A(f"v_cndmask_b32 v{p+r}, v{p+r}, v{vT+1}, s[{sMk}:{sMk+1}]")
            soff(a, ct)
            A(f"buffer_store_dwordx4 {vr(p,4)}, v{vL16}, {sr(sWS,4)}, s{sT2} offen")
            A(f"buffer_store_dwordx4 {vr(p+4,4)}, v{vL16}, {sr(sWS,4)}, s{sT2} offen offset:1024")
    A("s_endpgm")
    A.lab("K1_LOOP_F")
    mainloop('F')
    A(f"s_sub_u32 s{sT0}, s{sN}, 12")
    A(f"s_lshl_b32 s{sT0}, s{sT0}, 1")
    A(f"s_add_u32 s{sT0}, s{sT0}, s{sT3}")
    A(f"s_lshl_b32 s{sT0}, s{sT0}, 18")
    A(f"s_lshl_b32 s{sT1}, s{sM}, 9")
    A(f"s_add_u32 s{sT0}, s{sT0}, s{sT1}")
    A(f"s_and_b32 s{sT1}, s{sW}, 1")
    A(f"s_lshl_b32 s{sT1}, s{sT1}, 3")
    A(f"s_add_u32 s{sT0}, s{sT0}, s{sT1}")
    A(f"s_add_u32 s{sD1}, s{sT0}, {ZF}")
    A(f"v_and_b32 v{vT}, 31, v{vLane}")
    A(f"v_lshlrev_b32 v{vT}, 4, v{vT}")
    A(f"v_lshrrev_b32 v{vT+1}, 5, v{vLane}")
    A(f"v_lshl_add_u32 v{vT}, v{vT+1}, 15, v{vT}")
    for a in range(2):
        xr = acc + 32*a; xi = xr + 16
        for r in range(8):
            A(f"v_cvt_pk_bf16_f32 v{pk+r}, v{xr+2*r}, v{xr+2*r+1}")
        for r in range(8):
            A(f"v_cvt_pk_bf16_f32 v{pk+8+r}, v{xi+2*r}, v{xi+2*r+1}")
        for r in range(8):
            A(f"v_cvt_pk_bf16_f32 v{pk+16+r}, -v{xr+2*r}, -v{xr+2*r+1}")
        zr = z + 32*a; zi = zr + 16
        C = lambda f: vr(mC+16*a+4*f, 4)
        S = lambda f: vr(mC+16*a+8+4*f, 4)
        A(f"v_mfma_f32_32x32x16_bf16 {vr(zr,16)}, {vr(pk,4)}, {C(0)}, 0")
        A(f"v_mfma_f32_32x32x16_bf16 {vr(zi,16)}, {vr(pk+8,4)}, {C(0)}, 0")
        A(f"v_mfma_f32_32x32x16_bf16 {vr(zr,16)}, {vr(pk+4,4)}, {C(1)}, {vr(zr,16)}")
        A(f"v_mfma_f32_32x32x16_bf16 {vr(zi,16)}, {vr(pk+12,4)}, {C(1)}, {vr(zi,16)}")
        A(f"v_mfma_f32_32x32x16_bf16 {vr(zr,16)}, {vr(pk+8,4)}, {S(0)}, {vr(zr,16)}")
        A(f"v_mfma_f32_32x32x16_bf16 {vr(zi,16)}, {vr(pk+16,4)}, {S(0)}, {vr(zi,16)}")
        A(f"v_mfma_f32_32x32x16_bf16 {vr(zr,16)}, {vr(pk+12,4)}, {S(1)}, {vr(zr,16)}")
        A(f"v_mfma_f32_32x32x16_bf16 {vr(zi,16)}, {vr(pk+20,4)}, {S(1)}, {vr(zi,16)}")
    A.nop(12)
    for r in range(16):
        p = acc + 2*r
        A(f"v_cvt_pk_bf16_f32 v{p}, v{z+r}, v{z+16+r}")
        A(f"v_cvt_pk_bf16_f32 v{p+1}, v{z+32+r}, v{z+48+r}")
        A(f"s_add_u32 s{sT2}, s{sD1}, {(8*(r>>2) + (r&3))*8192}")
        A(f"buffer_store_dwordx2 {vr(p,2)}, v{vT}, {sr(sWS,4)}, s{sT2} offen")
    A.lab("K1_END")
    A("s_endpgm")
    return name, nv

def k2(A):
    name = "k2_kernel"
    A.raw(f".globl {name}\n.p2align 8\n.type {name},@function")
    A.lab(name)
    sWS, sTB, sWR, sWI = 16, 20, 24, 28
    sW, sH, sQb, sA, sXc = 36, 37, 38, 39, 40
    sT0, sT1, sT2, sT3 = 44, 45, 46, 47
    sKV, sI, sCnt = 48, 49, 50
    sHi = 52
    sC = 54
    LRED = 8192
    V = VA(1)
    vLane = V(); vL16 = V(); vIdx = V(); vT = V(8, 2); vRw = V(3, 1); vRr = V()
    Q = V(32, 4); O = V(64, 4); S = V(64, 4); KV = V(64, 4)
    nv_att = V.n
    A("s_cmp_ge_u32 s2, 256")
    A("s_cbranch_scc1 K2_END")
    A("s_load_dwordx2 s[12:13], s[0:1], 72")
    A("s_load_dwordx4 s[4:7], s[0:1], 8")
    A(f"v_lshrrev_b32 v{vT}, 6, v0")
    A(f"v_and_b32 v{vLane}, 63, v0")
    A(f"v_readfirstlane_b32 s{sW}, v{vT}")
    A(f"v_lshlrev_b32 v{vL16}, 4, v{vLane}")
    A(f"s_and_b32 s{sXc}, s2, 7")
    A(f"s_lshr_b32 s{sA}, s2, 3")
    A(f"s_cmp_ge_u32 s{sW}, 4")
    A("s_cbranch_scc1 K2_FFT")
    A(f"s_and_b32 s{sT0}, s{sA}, 1")
    A(f"s_lshl_b32 s{sH}, s{sXc}, 1")
    A(f"s_add_u32 s{sH}, s{sH}, s{sT0}")
    A(f"s_lshr_b32 s{sQb}, s{sA}, 1")
    A(f"s_lshl_b32 s{sKV}, s{sH}, 18")
    A(f"s_lshl_b32 s{sT0}, s{sW}, 16")
    A(f"s_add_u32 s{sKV}, s{sKV}, s{sT0}")
    A(f"s_add_u32 s{sKV}, s{sKV}, {KVF}")
    A(f"s_mov_b32 s{sI}, s{sQb}")
    A(f"s_lshl_b32 s{sT3}, s{sH}, 17")
    A(f"s_lshl_b32 s{sT0}, s{sQb}, 13")
    A(f"s_add_u32 s{sT3}, s{sT3}, s{sT0}")
    A("s_waitcnt lgkmcnt(0)")
    A.srd(sWS, 12, 13, WS_SIZE)
    def kvload(st):
        b = KV + 16*st
        A(f"s_lshl_b32 s{sT0}, s{sI}, 12")
        A(f"s_add_u32 s{sT0}, s{sT0}, s{sKV}")
        for f in range(4):
            A(f"buffer_load_dwordx4 {vr(b+4*f,4)}, v{vL16}, {sr(sWS,4)}, s{sT0} offen offset:{1024*f}")
        A(f"s_add_u32 s{sI}, s{sI}, 1")
        A(f"s_and_b32 s{sI}, s{sI}, 15")
    def qload(t):
        A(f"s_add_u32 s{sT0}, s{sW}, {1+t}")
        A(f"s_and_b32 s{sT0}, s{sT0}, 3")
        A(f"s_lshl_b32 s{sT0}, s{sT0}, 11")
        A(f"s_add_u32 s{sT0}, s{sT0}, s{sT3}")
        A(f"buffer_load_dwordx4 {vr(Q+8*t,4)}, v{vL16}, {sr(sWS,4)}, s{sT0} offen")
        A(f"buffer_load_dwordx4 {vr(Q+8*t+4,4)}, v{vL16}, {sr(sWS,4)}, s{sT0} offen offset:1024")
    qload(0); kvload(0); qload(1); qload(2); qload(3); kvload(1); kvload(2)
    for r in range(64): A(f"v_mov_b32 v{O+r}, 0")
    for r in range(8): A(f"v_mov_b32 v{S+48+8+r}, 0")
    for r in range(4): A(f"v_mov_b32 v{KV+48+12+r}, 0")
    A(f"v_mov_b32 v{vIdx}, 0xdddddddd")
    A(f"s_mov_b32 s{sHi}, 0")
    A(f"s_mov_b32 s{sHi+1}, -1")
    for t in range(3):
        A(f"s_add_u32 s{sT0}, s{sW}, {1+t}")
        A(f"s_and_b32 s{sT0}, s{sT0}, 3")
        A(f"s_mul_i32 s{sT0}, s{sT0}, 12288")
        A(f"s_add_u32 s{sT0}, s{sT0}, {LRED + 4096*t}")
        A(f"v_add_u32 v{vRw+t}, s{sT0}, v{vL16}")
    A(f"s_mul_i32 s{sT0}, s{sW}, 12288")
    A(f"s_add_u32 s{sT0}, s{sT0}, {LRED}")
    A(f"v_add_u32 v{vRr}, s{sT0}, v{vL16}")
    K0 = lambda st: vr(KV+16*st, 4)
    K1 = lambda st: vr(KV+16*st+4, 4)
    V0 = lambda st: vr(KV+16*st+8, 4)
    V1 = lambda st: vr(KV+16*st+12, 4)
    def qk0(st, t): A(f"v_mfma_f32_32x32x16_bf16 {vr(S+16*t,16)}, {K0(st)}, {vr(Q+8*t,4)}, 0")
    def qk1(st, t): A(f"v_mfma_f32_32x32x16_bf16 {vr(S+16*t,16)}, {K1(st)}, {vr(Q+8*t+4,4)}, {vr(S+16*t,16)}")
    def pv0(st, t): A(f"v_smfmac_f32_32x32x32_bf16 {vr(O+16*t,16)}, {V0(st)}, {vr(S+16*t,8)}, v{vIdx}")
    def pv1(st, t): A(f"v_smfmac_f32_32x32x32_bf16 {vr(O+16*t,16)}, {V1(st)}, {vr(S+16*t+8,8)}, v{vIdx}")
    def ex(t, a, b):
        for r in range(a, b): A(f"v_exp_f32 v{S+16*t+r}, v{S+16*t+r}")
    def redw(t):
        for j in range(4):
            A(f"ds_write_b128 v{vRw+t}, {vr(O+16*t+4*j,4)} offset:{1024*j}")
    A("s_waitcnt vmcnt(14)")
    qk0(0, 0); qk1(0, 0)
    A(f"s_mov_b32 s{sCnt}, 0")
    A("s_waitcnt vmcnt(8)")
    A.nop(10)
    def keytile(st, load, vmw, last):
        for t in range(4):
            nst, nt = (st, t+1) if t < 3 else ((st+1) & 3, 0)
            pst, pt = (st, t-1) if t > 0 else ((st-1) & 3, 3)
            fin = last and t == 3
            if t == 3 and vmw is not None: A(f"s_waitcnt vmcnt({vmw})")
            if not fin: qk0(nst, nt)
            ex(t, 0, 4)
            if not fin: qk1(nst, nt)
            if last and t >= 2: redw(t-2)
            ex(t, 4, 8)
            pv1(pst, pt)
            if t == 0 and load: kvload((st+3) & 3)
            ex(t, 8, 12)
            pv0(st, t)
            ex(t, 12, 16)
    A.raw(".p2align 6")
    A.lab("K2_LOOP")
    for st in range(4): keytile(st, True, 8, False)
    A(f"s_add_u32 s{sCnt}, s{sCnt}, 1")
    A(f"s_cmp_lg_u32 s{sCnt}, 2")
    A("s_cbranch_scc1 K2_NOBAR")
    A("s_barrier")
    A.lab("K2_NOBAR")
    A(f"s_cmp_lg_u32 s{sCnt}, 3")
    A("s_cbranch_scc1 K2_LOOP")
    keytile(0, True, 8, False)
    keytile(1, False, 4, False)
    keytile(2, False, 0, False)
    keytile(3, False, None, True)
    A.nop(2)
    pv1(3, 3)
    A.nop(6)
    redw(2)
    A("s_waitcnt lgkmcnt(0)")
    A("s_barrier")
    for t in range(3):
        for j in range(4):
            A(f"ds_read_b128 {vr(S+16*t+4*j,4)}, v{vRr} offset:{4096*t+1024*j}")
    Of = O + 48
    for t in range(3):
        A(f"s_waitcnt lgkmcnt({8-4*t})")
        for r in range(8):
            A(f"v_pk_add_f32 {vr(Of+2*r,2)}, {vr(Of+2*r,2)}, {vr(S+16*t+2*r,2)}")
    A(f"v_mov_b32 v{vT}, v{Of+12}")
    A(f"v_mov_b32 v{vT+1}, v{Of+12}")
    A(f"v_mul_f32 v{vT+2}, 0, v{Of}")
    for r in range(1, 16): A(f"v_fma_f32 v{vT+2}, v{Of+r}, 0, v{vT+2}")
    A(f"v_permlane32_swap_b32 v{vT}, v{vT+1}")
    A(f"v_add_f32 v{vT+2}, v{vT+2}, v{vT+1}")
    A(f"v_cmp_le_f32 vcc, {hex(f32(2.0**-30))}, v{vT+2}")
    A(f"s_mov_b64 s[{sT0}:{sT0+1}], vcc")
    A(f"v_cmp_ge_f32 vcc, {hex(f32(2.0**40))}, v{vT+2}")
    A(f"s_and_b64 vcc, vcc, s[{sT0}:{sT0+1}]")
    A("s_cmp_eq_u64 vcc, -1")
    A("s_cbranch_scc0 K2_SLOW")
    A.lab("K2_FIN")
    A(f"v_rcp_f32 v{vT+2}, v{vT+1}")
    A(f"s_lshl_b32 s{sT0}, s{sQb}, 2")
    A(f"s_add_u32 s{sT0}, s{sT0}, s{sW}")
    A(f"s_lshl_b32 s{sT0}, s{sT0}, 15")
    A(f"s_lshl_b32 s{sT1}, s{sH}, 11")
    A(f"s_add_u32 s{sT0}, s{sT0}, s{sT1}")
    A(f"s_add_u32 s{sT0}, s{sT0}, {OF}")
    A(f"v_mov_b32 v{vT+3}, v{vT+2}")
    for r in range(8):
        A(f"v_pk_mul_f32 {vr(Of+2*r,2)}, {vr(Of+2*r,2)}, {vr(vT+2,2)}")
    for r in range(8):
        A(f"v_cvt_pk_bf16_f32 v{S+r}, v{Of+2*r}, v{Of+2*r+1}")
    A(f"v_cndmask_b32 v{S+6}, v{S+6}, 0, s[{sHi}:{sHi+1}]")
    A(f"v_cndmask_b32 v{S+7}, v{S+7}, 0, s[{sHi}:{sHi+1}]")
    A(f"buffer_store_dwordx4 {vr(S,4)}, v{vL16}, {sr(sWS,4)}, s{sT0} offen")
    A(f"buffer_store_dwordx4 {vr(S+4,4)}, v{vL16}, {sr(sWS,4)}, s{sT0} offen offset:1024")
    A("s_endpgm")
    A.lab("K2_SLOW")
    vM = vT+4; vN = vT+5; vAl = vT+6
    A(f"s_lshl_b32 s{sKV}, s{sH}, 18")
    A(f"s_add_u32 s{sKV}, s{sKV}, {KVF}")
    A(f"s_mov_b32 s{sCnt}, 0")
    for r in range(16): A(f"v_mov_b32 v{Of+r}, 0")
    A(f"v_mov_b32 v{vM}, 0xff7fffff")
    A.lab("K2_SLOOP")
    for f in range(4):
        A(f"buffer_load_dwordx4 {vr(KV+4*f,4)}, v{vL16}, {sr(sWS,4)}, s{sKV} offen offset:{1024*f}")
    A("s_waitcnt vmcnt(0)")
    A(f"v_mfma_f32_32x32x16_bf16 {vr(S,16)}, {K0(0)}, {vr(Q+24,4)}, 0")
    A(f"v_mfma_f32_32x32x16_bf16 {vr(S,16)}, {K1(0)}, {vr(Q+28,4)}, {vr(S,16)}")
    A.nop(16)
    A(f"v_max3_f32 v{vN}, v{vM}, v{S}, v{S+1}")
    for r in range(1, 8): A(f"v_max3_f32 v{vN}, v{vN}, v{S+2*r}, v{S+2*r+1}")
    A(f"v_mov_b32 v{vAl}, v{vN}")
    A.nop(2)
    A(f"v_permlane32_swap_b32 v{vN}, v{vAl}")
    A.nop(2)
    A(f"v_max_f32 v{vN}, v{vN}, v{vAl}")
    A(f"v_sub_f32 v{vAl}, v{vM}, v{vN}")
    A(f"v_exp_f32 v{vAl}, v{vAl}")
    A(f"v_mov_b32 v{vM}, v{vN}")
    for r in range(16): A(f"v_sub_f32 v{S+r}, v{S+r}, v{vN}")
    for r in range(16): A(f"v_exp_f32 v{S+r}, v{S+r}")
    for r in range(16): A(f"v_mul_f32 v{Of+r}, v{Of+r}, v{vAl}")
    A.nop(2)
    A(f"v_smfmac_f32_32x32x32_bf16 {vr(Of,16)}, {V0(0)}, {vr(S,8)}, v{vIdx}")
    A(f"v_smfmac_f32_32x32x32_bf16 {vr(Of,16)}, {V1(0)}, {vr(S+8,8)}, v{vIdx}")
    A.nop(16)
    A(f"s_add_u32 s{sKV}, s{sKV}, 4096")
    A(f"s_add_u32 s{sCnt}, s{sCnt}, 1")
    A(f"s_cmp_lg_u32 s{sCnt}, 64")
    A("s_cbranch_scc1 K2_SLOOP")
    A(f"v_mov_b32 v{vT}, v{Of+12}")
    A(f"v_mov_b32 v{vT+1}, v{Of+12}")
    A.nop(2)
    A(f"v_permlane32_swap_b32 v{vT}, v{vT+1}")
    A.nop(2)
    A("s_branch K2_FIN")

    A.lab("K2_FFT")
    V = VA(vT + 8)
    Z = V(32, 4); TBr = V(32, 4); Wr = V(8, 4); Wi = V(8, 4); TC = V(32, 4); TD = V(32, 4)
    B = V(16, 4); U = V(16, 4); tw = V(16, 4); vWg = V(); vSt = V(); vEw = V(); vEr = V()
    AC = Z
    nv_fft = V.n
    A(f"s_sub_u32 s{sW}, s{sW}, 4")
    A(f"s_lshr_b32 s{sT0}, s{sA}, 2")
    A(f"s_lshl_b32 s{sT0}, s{sT0}, 5")
    A(f"s_lshl_b32 s{sT1}, s{sXc}, 2")
    A(f"s_add_u32 s{sC}, s{sT0}, s{sT1}")
    A(f"s_and_b32 s{sT0}, s{sA}, 3")
    A(f"s_add_u32 s{sC}, s{sC}, s{sT0}")
    A(f"s_cmp_gt_u32 s{sC}, 224")
    A("s_cbranch_scc1 K2_END")
    getpc_tabs(A, 14)
    A(f"v_and_b32 v{vT}, 31, v{vLane}")
    A(f"v_lshrrev_b32 v{vT+1}, 5, v{vLane}")
    A(f"v_lshl_add_u32 v{vT}, v{vT+1}, 7, v{vT}")
    A(f"v_mul_u32_u24 v{vWg}, 450, v{vT}")
    for r in range(8):
        A(f"v_mov_b32 v{Wr+r}, 0")
        A(f"v_mov_b32 v{Wi+r}, 0")
    A("s_waitcnt lgkmcnt(0)")
    A.srd(sWS, 12, 13, WS_SIZE)
    A.srd(sTB, 14, 15, TEND)
    A.srd(sWR, 4, 5, 921600)
    A.srd(sWI, 6, 7, 921600)
    A(f"s_lshl_b32 s{sT0}, s{sC}, 13")
    A(f"s_add_u32 s{sT0}, s{sT0}, {ZF}")
    A(f"s_add_u32 s{sT1}, s{sT0}, 4096")
    A(f"s_lshl_b32 s{sT2}, s{sW}, 13")
    A(f"s_add_u32 s{sT2}, s{sT2}, {T64F}")
    A(f"s_add_u32 s{sT3}, s{sT2}, 4096")
    for t in range(8):
        A(f"buffer_load_dwordx4 {vr(Z+4*t,4)}, v{vL16}, {sr(sWS,4)}, s{sT0 if t<4 else sT1} offen offset:{1024*(t&3)}")
        A(f"buffer_load_dwordx4 {vr(TBr+4*t,4)}, v{vL16}, {sr(sTB,4)}, s{sT2 if t<4 else sT3} offen offset:{1024*(t&3)}")
    A(f"s_mul_i32 s{sT0}, s{sW}, {512*450}")
    A(f"s_lshl_b32 s{sT1}, s{sC}, 1")
    A(f"s_add_u32 s{sT0}, s{sT0}, s{sT1}")
    for r in range(8):
        A(f"s_add_u32 s{sT1}, s{sT0}, {14400*(8*(r>>2)+(r&3))}")
        A(f"buffer_load_short_d16_hi v{Wr+r}, v{vWg}, {sr(sWR,4)}, s{sT1} offen")
        A(f"buffer_load_short_d16_hi v{Wi+r}, v{vWg}, {sr(sWI,4)}, s{sT1} offen")
    A(f"s_add_u32 s{sT2}, s{sT2}, {T64I-T64F}")
    A(f"s_add_u32 s{sT3}, s{sT3}, {T64I-T64F}")
    A(f"s_mov_b32 s{sT0}, {T32I}")
    A(f"s_mov_b32 s{sT1}, {T32I+4096}")
    for t in range(8):
        A(f"buffer_load_dwordx4 {vr(TC+4*t,4)}, v{vL16}, {sr(sTB,4)}, s{sT2 if t<4 else sT3} offen offset:{1024*(t&3)}")
    for t in range(8):
        A(f"buffer_load_dwordx4 {vr(TD+4*t,4)}, v{vL16}, {sr(sTB,4)}, s{sT0 if t<4 else sT1} offen offset:{1024*(t&3)}")
    A(f"v_and_b32 v{vT}, 15, v{vLane}")
    A(f"s_lshl_b32 s{sT0}, s{sW}, 4")
    A(f"v_add_u32 v{vT+1}, s{sT0}, v{vT}")
    A(f"v_cvt_f32_u32 v{vT+1}, v{vT+1}")
    A(f"v_mul_f32 v{vT+1}, {hex(f32(1/2048))}, v{vT+1}")
    A(f"v_lshrrev_b32 v{vT+2}, 4, v{vLane}")
    A(f"v_lshlrev_b32 v{vT+3}, 2, v{vT+2}")
    A(f"v_cvt_f32_u32 v{vT+3}, v{vT+3}")
    A(f"v_mul_f32 v{vT+3}, v{vT+3}, v{vT+1}")
    for a in range(2):
        for r in range(4):
            A(f"v_fmamk_f32 v{vT+4}, v{vT+1}, {hex(f32(16*a+r))}, v{vT+3}")
            A(f"v_cos_f32 v{tw+8*a+2*r}, v{vT+4}")
            A(f"v_sin_f32 v{tw+8*a+2*r+1}, v{vT+4}")
    A(f"s_lshl_b32 s{sT0}, s{sW}, 11")
    A(f"v_add_u32 v{vEw}, s{sT0}, v{vL16}")
    A(f"v_lshlrev_b32 v{vEr}, 4, v{vT}")
    A(f"v_lshl_add_u32 v{vEr}, v{vT+2}, 9, v{vEr}")
    A(f"v_mul_u32_u24 v{vSt}, {4*28672}, v{vT+2}")
    A(f"v_lshl_add_u32 v{vSt}, v{vT}, 4, v{vSt}")
    for t in range(8):
        A(f"s_waitcnt vmcnt({32 + 2*(7-t)})")
        A(f"v_mfma_f32_32x32x16_bf16 {vr(B,16)}, {vr(TBr+4*t,4)}, {vr(Z+4*t,4)}, {'0' if t==0 else vr(B,16)}")
    A("s_waitcnt vmcnt(16)")
    A.nop(12)
    for r in range(8):
        br, bi = B+r, B+8+r
        A(f"v_mul_f32 v{vT+4}, v{bi}, v{Wi+r}")
        A(f"v_mul_f32 v{vT+5}, v{bi}, v{Wr+r}")
        A(f"v_fma_f32 v{vT+4}, v{br}, v{Wr+r}, -v{vT+4}")
        A(f"v_fma_f32 v{vT+5}, v{br}, v{Wi+r}, v{vT+5}")
        A(f"v_cvt_pk_bf16_f32 v{U+r}, v{vT+4}, v{vT+5}")
    A(f"ds_write_b128 v{vEw}, {vr(U,4)}")
    A(f"ds_write_b128 v{vEw}, {vr(U+4,4)} offset:1024")
    A("s_waitcnt lgkmcnt(0)")
    A("s_barrier")
    for u in range(4):
        for a in range(2):
            A(f"ds_read_b128 {vr(AC+8*u+4*a,4)}, v{vEr} offset:{2048*u+256*a}")
    A("s_waitcnt vmcnt(8)")
    for u in range(4):
        A(f"s_waitcnt lgkmcnt({6-2*u})")
        for a in range(2):
            for p in range(2):
                d = vr(U+8*a+4*p, 4)
                A(f"v_mfma_f32_16x16x32_bf16 {d}, {vr(AC+8*u+4*a,4)}, {vr(TC+16*p+4*u,4)}, {'0' if u==0 else d}")
    A.nop(8)
    for a in range(2):
        for r in range(4):
            ur, ui = U+8*a+r, U+8*a+4+r
            c, s_ = tw+8*a+2*r, tw+8*a+2*r+1
            A(f"v_mul_f32 v{vT+4}, v{ui}, v{s_}")
            A(f"v_mul_f32 v{vT+5}, v{ui}, v{c}")
            A(f"v_fma_f32 v{vT+4}, v{ur}, v{c}, -v{vT+4}")
            A(f"v_fma_f32 v{vT+5}, v{ur}, v{s_}, v{vT+5}")
            A(f"v_cvt_pk_bf16_f32 v{Z+4*a+r}, v{vT+4}, v{vT+5}")
    A("s_waitcnt vmcnt(0)")
    A(f"s_mul_i32 s{sT0}, s{sW}, {16*28672}")
    A(f"s_add_u32 s{sT0}, s{sT0}, {YF}")
    for a in range(2):
        for b in range(2):
            for p in range(2):
                d = vr(B+8*b+4*p, 4)
                A(f"v_mfma_f32_16x16x32_bf16 {d}, {vr(Z+4*a,4)}, {vr(TD+4*((2*b+p)*2+a),4)}, {'0' if a==0 else d}")
    A(f"s_cmp_eq_u32 s{sC}, 224")
    A(f"s_cselect_b32 s{sT3}, 2, 0")
    A(f"s_cselect_b32 s{sC}, 0, s{sC}")
    A(f"s_lshr_b32 s{sT1}, s{sC}, 2")
    A(f"s_lshl_b32 s{sT1}, s{sT1}, 9")
    A(f"s_and_b32 s{sT2}, s{sC}, 3")
    A(f"s_lshl_b32 s{sT2}, s{sT2}, 2")
    A(f"s_add_u32 s{sT0}, s{sT0}, s{sT1}")
    A(f"s_add_u32 s{sT0}, s{sT0}, s{sT2}")
    A(f"s_add_u32 s{sT0}, s{sT0}, s{sT3}")
    for b in range(2):
        for r in range(4):
            A(f"v_cvt_pk_bf16_f32 v{U+4*b+r}, v{B+8*b+r}, v{B+8*b+4+r}")
    A(f"s_cmp_eq_u32 s{sC}, 0")
    A("s_cbranch_scc1 K2_ST16")
    for r in range(4):
        A(f"s_add_u32 s{sT1}, s{sT0}, {28672*r}")
        for b in range(2):
            A(f"buffer_store_dword v{U+4*b+r}, v{vSt}, {sr(sWS,4)}, s{sT1} offen offset:{256*b}")
    A("s_endpgm")
    A.lab("K2_ST16")
    for r in range(4):
        A(f"s_add_u32 s{sT1}, s{sT0}, {28672*r}")
        for b in range(2):
            A(f"buffer_store_short v{U+4*b+r}, v{vSt}, {sr(sWS,4)}, s{sT1} offen offset:{256*b}")
    A.lab("K2_END")
    A("s_endpgm")
    return name, max(nv_att, nv_fft)

def k3(A):
    name = "k3_kernel"
    A.raw(f".globl {name}\n.p2align 8\n.type {name},@function")
    A.lab(name)
    sWS, sA_, sOut = 16, 20, 24
    sW, sDt, sRp = 36, 37, 38
    sT0, sT1, sT2, sT3 = 44, 45, 46, 47
    sA0, sA1, sB0, sB1 = 48, 49, 50, 51
    V = VA(1)
    vLane = V(); vL16 = V(); vT = V(4, 2); vG = V(4, 2); vRw = V(3, 1); vRr = V(); vO = V()
    acc = V(64, 4)
    tmp = V(48, 4)
    nv = V.n
    NA = 256
    A("s_cmp_ge_u32 s2, 224")
    A("s_cbranch_scc1 K3_END")
    A("s_load_dwordx2 s[12:13], s[0:1], 72")
    A("s_load_dwordx2 s[4:5], s[0:1], 56")
    A(f"v_lshrrev_b32 v{vT}, 6, v0")
    A(f"v_and_b32 v{vLane}, 63, v0")
    A(f"v_readfirstlane_b32 s{sW}, v{vT}")
    A(f"v_lshlrev_b32 v{vL16}, 4, v{vLane}")
    A(f"s_and_b32 s{sT0}, s2, 7")
    A(f"s_lshl_b32 s{sT0}, s{sT0}, 2")
    A(f"s_bfe_u32 s{sT1}, s2, 0x20003")
    A(f"s_add_u32 s{sRp}, s{sT0}, s{sT1}")
    A(f"s_lshr_b32 s{sDt}, s2, 5")
    A(f"s_and_b32 s{sT0}, s{sW}, 1")
    A(f"s_lshl_b32 s{sA0}, s{sDt}, 1")
    A(f"s_add_u32 s{sA0}, s{sA0}, s{sT0}")
    A(f"s_xor_b32 s{sA1}, s{sA0}, 1")
    A(f"s_lshr_b32 s{sT1}, s{sW}, 1")
    A(f"s_lshl_b32 s{sB0}, s{sRp}, 1")
    A(f"s_add_u32 s{sB0}, s{sB0}, s{sT1}")
    A(f"s_xor_b32 s{sB1}, s{sB0}, 1")
    A(f"v_and_b32 v{vT}, 31, v{vLane}")
    A(f"v_lshrrev_b32 v{vT+1}, 5, v{vLane}")
    A(f"v_mul_u32_u24 v{vO}, 57344, v{vT}")
    A(f"v_lshl_add_u32 v{vO}, v{vT+1}, 4, v{vO}")
    A(f"s_mul_i32 s{sT2}, s{sB0}, 896")
    A(f"s_lshl_b32 s{sT3}, s{sA0}, 6")
    A(f"s_add_u32 s{sT2}, s{sT2}, s{sT3}")
    A(f"v_add_u32 v{vO}, s{sT2}, v{vO}")
    A(f"v_lshlrev_b32 v{vT}, 9, v{vT}")
    A(f"s_lshl_b32 s{sT2}, s{sT1}, 2")
    A(f"s_add_u32 s{sT2}, s{sT2}, {GT}")
    A(f"s_lshl_b32 s{sT3}, s{sB0}, 3")
    A(f"s_add_u32 s54, s{sT2}, s{sT3}")
    A(f"s_lshl_b32 s{sT3}, s{sB1}, 3")
    A(f"s_add_u32 s55, s{sT2}, s{sT3}")
    A(f"s_cmp_ge_u32 s{sW}, 2")
    A("s_cbranch_scc1 K3_B")
    def body(nk, lab):
        A(f"buffer_load_dword v{vG}, v{vT}, {sr(sWS,4)}, s54 offen")
        A(f"buffer_load_dword v{vG+2}, v{vT}, {sr(sWS,4)}, s55 offen")
        for k in range(nk):
            o = 1024*(k & 3)
            for i, (s, srd) in enumerate(((sA0, sA_), (sB0, sWS), (sA1, sA_), (sB1, sWS))):
                A(f"buffer_load_dwordx4 {ar(16*k+4*i,4)}, v{vL16}, {sr(srd,4)}, s{s} offen offset:{o}")
            if (k & 3) == 3:
                for s in (sA0, sA1, sB0, sB1): A(f"s_add_u32 s{s}, s{s}, 4096")
            if k == 14:
                pass
        for l in range(1, 4):
            A(f"s_xor_b32 s{sT0}, s{sW}, {l}")
            A(f"s_mul_i32 s{sT0}, s{sT0}, 12288")
            A(f"s_add_u32 s{sT0}, s{sT0}, {4096*(l-1)}")
            A(f"v_add_u32 v{vRw+l-1}, s{sT0}, v{vL16}")
        A(f"s_mul_i32 s{sT0}, s{sW}, 12288")
        A(f"v_add_u32 v{vRr}, s{sT0}, v{vL16}")
        for k in range(nk):
            A(f"s_waitcnt vmcnt({min(63, 4*(nk-1-k))})")
            for l in (3, 2, 1, 0):
                a, b = l & 1, l >> 1
                d = vr(acc+16*l, 16)
                A(f"v_mfma_f32_32x32x16_bf16 {d}, {ar(16*k+8*a,4)}, {ar(16*k+4+8*b,4)}, {'0' if k==0 else d}")
    getpc_tabs(A, 14)
    for s in (sA0, sA1, sB0, sB1): A(f"s_mul_i32 s{s}, s{s}, 28672")
    A(f"s_mul_i32 s{sT0}, s{sT0}, {14*1024}")
    A(f"s_add_u32 s{sT1}, s{sT0}, {TG}")
    A(f"s_add_u32 s{sT0}, s{sT0}, {YF}")
    A(f"s_add_u32 s{sA0}, s{sA0}, s{sT1}")
    A(f"s_add_u32 s{sA1}, s{sA1}, s{sT1}")
    A(f"s_add_u32 s{sB0}, s{sB0}, s{sT0}")
    A(f"s_add_u32 s{sB1}, s{sB1}, s{sT0}")
    A("s_waitcnt lgkmcnt(0)")
    A.srd(sWS, 12, 13, WS_SIZE)
    A.srd(sA_, 14, 15, TEND)
    body(14, "A")
    A("s_branch K3_EPI")
    A.lab("K3_B")
    for s in (sA0, sA1, sB0, sB1): A(f"s_lshl_b32 s{s}, s{s}, 15")
    A(f"s_lshl_b32 s{sT0}, s{sT0}, 14")
    A(f"s_add_u32 s{sT1}, s{sT0}, {WOT}")
    A(f"s_add_u32 s{sT0}, s{sT0}, {OF}")
    A(f"s_add_u32 s{sA0}, s{sA0}, s{sT1}")
    A(f"s_add_u32 s{sA1}, s{sA1}, s{sT1}")
    A(f"s_add_u32 s{sB0}, s{sB0}, s{sT0}")
    A(f"s_add_u32 s{sB1}, s{sB1}, s{sT0}")
    A("s_waitcnt lgkmcnt(0)")
    A.srd(sWS, 12, 13, WS_SIZE)
    A.srd(sA_, 12, 13, WS_SIZE)
    body(16, "B")
    A.lab("K3_EPI")
    A.srd(sOut, 4, 5, 1835008)
    A(f"v_mov_b32 v{vG+1}, v{vG}")
    A(f"v_mov_b32 v{vG+3}, v{vG+2}")
    A.nop(4)
    for l in (3, 2, 1):
        d = acc + 16*l
        for r in range(8):
            A(f"v_pk_mul_f32 {vr(d+2*r,2)}, {vr(d+2*r,2)}, {vr(vG+2*(l>>1),2)}")
        for j in range(4):
            A(f"ds_write_b128 v{vRw+l-1}, {vr(d+4*j,4)} offset:{1024*j}")
    for r in range(8):
        A(f"v_pk_mul_f32 {vr(acc+2*r,2)}, {vr(acc+2*r,2)}, {vr(vG,2)}")
    A("s_waitcnt lgkmcnt(0)")
    A("s_barrier")
    for t in range(3):
        for j in range(4):
            A(f"ds_read_b128 {vr(tmp+16*t+4*j,4)}, v{vRr} offset:{4096*t+1024*j}")
    for t in range(3):
        A(f"s_waitcnt lgkmcnt({8-4*t})")
        for r in range(8):
            A(f"v_pk_add_f32 {vr(acc+2*r,2)}, {vr(acc+2*r,2)}, {vr(tmp+16*t+2*r,2)}")
    for r in range(8):
        A(f"v_cvt_pk_bf16_f32 v{tmp+r}, v{acc+2*r}, v{acc+2*r+1}")
    A("s_nop 1")
    for g in range(2):
        A(f"v_permlane32_swap_b32 v{tmp+4*g}, v{tmp+4*g+2}")
        A(f"v_permlane32_swap_b32 v{tmp+4*g+1}, v{tmp+4*g+3}")
    for g in range(2):
        A(f"buffer_store_dwordx4 {vr(tmp+4*g,4)}, v{vO}, {sr(sOut,4)}, 0 offen offset:{32*g}")
    A.lab("K3_END")
    A("s_endpgm")
    accoff = (nv + 3)//4*4
    return name, accoff + NA, accoff

def tables():
    L = []
    for i in range(448):
        c = math.cos(2*math.pi*i/448)
        if i % 112 == 0: c = float(round(c))
        L.append(f".set C{i},{bf16(c)}\n.set G{i},{bf16(c*2/917504)}")
    L.append(f".set C448,0\n.set G448,{bf16(1/917504)}\n.set G449,{bf16(-1/917504)}")
    for i in range(64):
        c = math.cos(2*math.pi*i/64)
        if i % 16 == 0: c = float(round(c))
        L.append(f".set D{i},{bf16(c)}")
    L.append(""".altmacro
.macro EC n
.short C\\n
.endm
.macro EG n
.short G\\n
.endm
.macro ED n
.short D\\n
.endm
.p2align 8
tabs:
.set q_n,0
.rept 4
.set q_k,0
.rept 28
.set q_t,0
.rept 4
.set q_l,0
.rept 64
.set q_c,64*q_n+32*(q_t>>1)+(q_l&31)
.set q_d,16*q_k+8*(q_l>>5)
.if q_c>224
.quad 0,0
.else
.rept 8
EC %((q_c*q_d+112*(q_t&1))%448)
.set q_d,q_d+1
.endr
.endif
.set q_l,q_l+1
.endr
.set q_t,q_t+1
.endr
.set q_k,q_k+1
.endr
.set q_n,q_n+1
.endr
.set q_n,0
.rept 14
.set q_k,0
.rept 28
.set q_l,0
.rept 64
.set q_d,32*q_n+(q_l&31)
.set q_c,8*q_k+4*(q_l>>5)
.rept 4
.if q_c==0
EG 448
EG %(448+(q_d&1))
.else
EG %((q_c*q_d)%448)
EG %((q_c*q_d+112)%448)
.endif
.set q_c,q_c+1
.endr
.set q_l,q_l+1
.endr
.set q_k,q_k+1
.endr
.set q_n,q_n+1
.endr
.set q_n,0
.rept 4
.set q_k,0
.rept 8
.set q_l,0
.rept 64
.set q_c,16*q_n+(q_l&15)
.set q_p,(q_l>>4)&1
.set q_d,8*q_k+4*(q_l>>5)
.rept 4
ED %((q_c*q_d+16*q_p)&63)
ED %((q_c*q_d+48+16*q_p)&63)
.set q_d,q_d+1
.endr
.set q_l,q_l+1
.endr
.set q_k,q_k+1
.endr
.set q_n,q_n+1
.endr
.set q_n,0
.rept 4
.set q_p,0
.rept 2
.set q_k,0
.rept 4
.set q_l,0
.rept 64
.set q_c,16*q_n+(q_l&15)
.set q_d,16*q_k+4*(q_l>>4)
.rept 4
ED %((q_c*q_d+48*q_p)&63)
ED %((q_c*q_d+16+48*q_p)&63)
.set q_d,q_d+1
.endr
.set q_l,q_l+1
.endr
.set q_k,q_k+1
.endr
.set q_p,q_p+1
.endr
.set q_n,q_n+1
.endr
.set q_n,0
.rept 2
.set q_p,0
.rept 2
.set q_k,0
.rept 2
.set q_l,0
.rept 64
.set q_c,16*q_n+(q_l&15)
.set q_d,16*q_k+4*(q_l>>4)
.rept 4
ED %((2*q_c*q_d+48*q_p)&63)
ED %((2*q_c*q_d+16+48*q_p)&63)
.set q_d,q_d+1
.endr
.set q_l,q_l+1
.endr
.set q_k,q_k+1
.endr
.set q_p,q_p+1
.endr
.set q_n,q_n+1
.endr
.noaltmacro""")
    return "\n".join(L) + "\n"

def main(out):
    A = Asm()
    hdr = """; gated mix of GFNet spectral filter and full softmax MHA; three launches
; @launch kernel=k1_kernel grid=(256,1,1) block=(256,1,1) lds=163840
; @launch kernel=k2_kernel grid=(256,1,1) block=(512,1,1) lds=57344
; @launch kernel=k3_kernel grid=(224,1,1) block=(256,1,1) lds=49152
.amdgcn_target "amdgcn-amd-amdhsa--gfx950"
.text
"""
    n1, v1 = k1(A)
    n2, v2 = k2(A)
    n3, v3, a3 = k3(A)
    s = hdr + A.text() + '.section .rodata,"a"\n.p2align 6\n' + kdesc(n1, v1) + ".p2align 6\n" + kdesc(n2, v2) + ".p2align 6\n" + kdesc(n3, v3, acc=a3) + tables()
    open(out, "w").write(s)
    print("vgprs", v1, v2, v3, "bytes", len(s))

if __name__ == "__main__":
    main(sys.argv[1] if len(sys.argv) > 1 else "gated_mix__spectral_gfnet__softmax_full_mha__prompt.s")
```
